```python
import torch

def _softmax(x, axis=-1):
    return torch.softmax(x, dim=axis)
def _gelu(x):
    return torch.nn.functional.gelu(x, approximate="tanh")
def _silu(x):
    return torch.nn.functional.silu(x)
def _sigmoid(x):
    return torch.sigmoid(x)
def _layernorm(x, axis=-1, eps=1e-5):
    m = x.mean(dim=axis, keepdim=True)
    v = x.var(dim=axis, keepdim=True, unbiased=False)
    return (x - m) / torch.sqrt(v + eps)
def _scatter_add(tgt, idx, src, axis=0):
    return tgt.clone().index_add_(axis, idx, src)
def _segment_sum(src, seg, n):
    out = torch.zeros((n,) + src.shape[1:], dtype=src.dtype)
    return out.index_add_(0, seg, src)
def _pad(x, pw):
    flat = tuple(v for pair in reversed(pw) for v in pair)
    return torch.nn.functional.pad(x, flat)

kernel_name = 'parallel_sum__gqa_block_cached__swiglu_ffn__decode'

def setup_inputs():

    _w = (lambda a: (lambda t: t.to(torch.bfloat16) if t.is_floating_point() else t)(torch.as_tensor(a)))
    def _A_setup():
        B, Sq, D = 2, 1, 576
        Hq, Hkv, Sk, Dh = 32, 16, 4096, 128
        assert Hq % Hkv == 0, (Hq, Hkv)
        return {
            "x": _w((lambda *s: torch.randn(*s, dtype=torch.bfloat16) * 0.05)(B, Sq, D)),
            "k_cache": _w((lambda *s: torch.randn(*s, dtype=torch.bfloat16) * 3.2)(B, Hkv, Sk, Dh)),
            "v_cache": _w((lambda *s: torch.randn(*s, dtype=torch.bfloat16) * 1.6)(B, Hkv, Sk, Dh)),
            "wq": _w((lambda *s: torch.randn(*s, dtype=torch.bfloat16) * 3.2)(D, Hq * Dh) * (D ** -0.5)),
            "wo": _w((lambda *s: torch.randn(*s, dtype=torch.bfloat16) * 1.6)(Hq * Dh, D) * ((Hq * Dh) ** -0.5)),
        }
    _A_in = _A_setup()

    def _B_setup():
        B, S, D, F = 2, 1, 576, 4608
        return {
            "x": _w((lambda *s: torch.randn(*s, dtype=torch.bfloat16) * 0.05)(B, S, D)),
            "w_gate": _w((lambda *s: torch.randn(*s, dtype=torch.bfloat16) * 0.05)(D, F)),
            "w_up": _w((lambda *s: torch.randn(*s, dtype=torch.bfloat16) * 0.05)(D, F)),
            "w_down": _w((lambda *s: torch.randn(*s, dtype=torch.bfloat16) * 0.05)(F, D)),
        }
    _B_in = _B_setup()

    return {
        "A_x": _A_in["x"],
        "A_k_cache": _A_in["k_cache"],
        "A_v_cache": _A_in["v_cache"],
        "A_wq": _A_in["wq"],
        "A_wo": _A_in["wo"],
        "B_x": _B_in["x"],
        "B_w_gate": _B_in["w_gate"],
        "B_w_up": _B_in["w_up"],
        "B_w_down": _B_in["w_down"],
    }

def reference(A_x, A_k_cache, A_v_cache, A_wq, A_wo, B_x, B_w_gate, B_w_up, B_w_down):
    def _A_ref(x, k_cache, v_cache, wq, wo):
        B, Sq, D = x.shape
        Hq, Dh = 32, 128
        Hkv = k_cache.shape[1]
        rep = Hq // Hkv
        q = (lambda x, *d: x.permute(*d))((x @ wq).reshape(B, Sq, Hq, Dh), 0, 2, 1, 3)
        k = (lambda x, n, axis: torch.repeat_interleave(x, n, dim=axis))(k_cache, rep, axis=1)
        v = (lambda x, n, axis: torch.repeat_interleave(x, n, dim=axis))(v_cache, rep, axis=1)
        scores = torch.einsum("bhqd,bhkd->bhqk", q, k) * (Dh ** -0.5)
        p = _softmax(scores, axis=-1)
        o = torch.einsum("bhqk,bhkd->bhqd", p, v)
        return (lambda x, *d: x.permute(*d))(o, 0, 2, 1, 3).reshape(B, Sq, Hq * Dh) @ wo

    def _B_ref(x, w_gate, w_up, w_down):
        g = _silu(x @ w_gate)
        u = x @ w_up
        return (g * u) @ w_down

    x = A_x
    xn = _layernorm(x, axis=-1)
    return x + _A_ref(xn, A_k_cache, A_v_cache, A_wq, A_wo) + _B_ref(xn, B_w_gate, B_w_up, B_w_down)
```

```python
NAME = "parallel_sum__gqa_block_cached__swiglu_ffn__decode"
HEADER = open("cdna_kernels/" + NAME + ".s.ref").read().split("; Override launch")[0]

class Asm:
    def __init__(self):
        self.lines = []
    def __call__(self, s):
        for l in s.strip("\n").split("\n"):
            self.lines.append(l)
    def label(self, n):
        self.lines.append(n + ":")
    def text(self):
        return "\n".join(self.lines) + "\n"

def kernel_wrap(body, name=NAME + "_kernel", vgpr=256, sgpr=102, accum=None):
    if accum is None:
        accum = min(256, (vgpr + 3) // 4 * 4)
    return f""".globl {name}
.p2align 8
.type {name},@function
{name}:
{body}
"""

def kd(name=NAME + "_kernel", vgpr=256, sgpr=102, accum=None):
    if accum is None:
        accum = min(256, (vgpr + 3) // 4 * 4)
    return f""".p2align 6
.amdhsa_kernel {name}
  .amdhsa_next_free_vgpr {vgpr}
  .amdhsa_next_free_sgpr {sgpr}
  .amdhsa_accum_offset {accum}
  .amdhsa_group_segment_fixed_size 0
  .amdhsa_kernarg_size 96
  .amdhsa_user_sgpr_count 2
  .amdhsa_user_sgpr_kernarg_segment_ptr 1
  .amdhsa_system_sgpr_workgroup_id_x 1
.end_amdhsa_kernel
"""

def file_text(launches, kernels):
    s = HEADER
    for l in launches:
        s += l + "\n"
    s += '.amdgcn_target "amdgcn-amd-amdhsa--gfx950"\n.text\n'
    for (n, b, v, sg, ac) in kernels:
        s += kernel_wrap(b, n)
    s += '.section .rodata,"a"\n'
    for (n, b, v, sg, ac) in kernels:
        s += kd(n, v, sg, ac)
    return s
```

```python
import re

def regs_of(tok):
    tok = tok.strip()
    neg = tok.lstrip('-').replace('abs(', '').replace(')', '').replace('|', '')
    m = re.fullmatch(r'([vsa])(\d+)', neg)
    if m: return [(m.group(1), int(m.group(2)))]
    m = re.fullmatch(r'([vsa])\[(\d+):(\d+)\]', neg)
    if m: return [(m.group(1), i) for i in range(int(m.group(2)), int(m.group(3)) + 1)]
    if neg == 'vcc': return [('s', 106), ('s', 107)]
    if neg == 'vcc_lo': return [('s', 106)]
    if neg == 'vcc_hi': return [('s', 107)]
    if neg == 'exec': return [('s', 126), ('s', 127)]
    if neg == 'm0': return [('s', 124)]
    return []

TRANS = ('v_exp_f32', 'v_log_f32', 'v_rcp_f32', 'v_rsq_f32', 'v_sqrt_f32', 'v_sin_f32', 'v_cos_f32')

class Ins:
    def __init__(self, line):
        self.line = line
        s = line.split(';')[0].strip()
        self.is_label = s.endswith(':')
        self.empty = (s == '' or s.startswith('.'))
        self.op = ''
        self.dst = []; self.src = []
        self.kind = 'other'
        if self.is_label or self.empty: return
        parts = s.split(None, 1)
        self.op = parts[0]
        rest = parts[1] if len(parts) > 1 else ''
        ops = [o.strip() for o in re.split(r',(?![^\[]*\])', rest)] if rest else []
        toks = []
        for o in ops:
            toks.append(o.split()[0] if o.split() else o)
        self.mods = rest
        op = self.op
        R = lambda i: regs_of(toks[i]) if i < len(toks) else []
        if op.startswith('v_mfma'):
            self.kind = 'mfma'
            self.dst = R(0); self.srcA = R(1); self.srcB = R(2); self.srcC = R(3)
            self.src = self.srcA + self.srcB + self.srcC
            self.passes = 8 if '32x32' in op else 4
        elif op.startswith('v_'):
            self.kind = 'valu'
            self.trans = op.replace('_e32', '').replace('_e64', '') in TRANS
            self.dpp = ('row_' in rest or 'quad_perm' in rest or 'wave_' in rest or '_dpp' in op)
            self.permlane = op.startswith('v_permlane')
            self.readlane = op.startswith('v_readlane') or op.startswith('v_readfirstlane')
            self.writelane = op.startswith('v_writelane')
            if op.startswith('v_cmp'):
                self.dst = R(0); self.src = R(1) + R(2)
                if op.startswith('v_cmpx'): self.dst += regs_of('exec')
            elif '_co_' in op:
                self.dst = R(0) + R(1); self.src = [r for i in range(2, len(toks)) for r in R(i)]
            elif self.permlane and 'swap' in op:
                self.dst = R(0) + R(1); self.src = R(0) + R(1)
            else:
                self.dst = R(0); self.src = [r for i in range(1, len(toks)) for r in R(i)]
                if op.startswith('v_fmac') or op.startswith('v_dot2c') or self.writelane or self.dpp:
                    self.src += R(0)
                if op.startswith('v_cndmask') and len(toks) == 3:
                    self.src += regs_of('vcc')
        elif op.startswith('buffer_') or op.startswith('global_'):
            self.kind = 'vmem'
            if 'load' in op or ('atomic' in op and 'sc0' in rest):
                self.dst = R(0); self.src = [r for i in range(1, len(toks)) for r in R(i)]
                self.store = False
            else:
                self.src = [r for i in range(0, len(toks)) for r in R(i)]
                self.store = True
                self.data = R(0) if op.startswith('buffer_') else R(1)
                self.wide = ('x3' in op or 'x4' in op)
        elif op.startswith('ds_'):
            self.kind = 'ds'
            if 'read' in op or 'permute' in op or 'swizzle' in op:
                self.dst = R(0); self.src = [r for i in range(1, len(toks)) for r in R(i)]
            else:
                self.src = [r for i in range(0, len(toks)) for r in R(i)]
        elif op.startswith('s_'):
            self.kind = 'salu'
            if op.startswith('s_nop'):
                self.nop = int(toks[0], 0) + 1
            if not (op.startswith('s_cmp') or op.startswith('s_cbranch') or op.startswith('s_wait') or op.startswith('s_branch') or op in ('s_barrier', 's_endpgm', 's_nop', 's_sleep', 's_setprio')):
                self.dst = R(0); self.src = [r for i in range(1, len(toks)) for r in R(i)]
            else:
                self.src = [r for i in range(0, len(toks)) for r in R(i)]

    def states(self):
        if self.is_label or self.empty: return 0
        if self.op == 's_nop': return self.nop
        return 1

def need(prod, cons):
    n = 0
    pd = set(prod.dst); cs = set(cons.src); cd = set(cons.dst)
    if prod.kind == 'valu':
        vd = {r for r in pd if r[0] in 'va'}
        sd = {r for r in pd if r[0] == 's'}
        if cons.kind == 'mfma' and (vd & cs): n = max(n, 2)
        if cons.kind == 'valu':
            if cons.dpp and (vd & cs): n = max(n, 2)
            if cons.permlane and (vd & cs): n = max(n, 2)
            if cons.readlane and (vd & cs): n = max(n, 1)
            if prod.trans and not cons.trans and (vd & (cs | cd)): n = max(n, 1)
            if sd & cs:
                n = max(n, 4 if (cons.readlane or cons.writelane) else 2)
            if cons.dpp and (('s', 126) in sd): n = max(n, 5)
        if cons.kind == 'mfma' and (('s', 126) in sd): n = max(n, 4)
        if cons.kind == 'mfma' and prod.trans and (vd & cs): n = max(n, 2)
        if cons.kind == 'vmem' and (sd & cs): n = max(n, 5)
        if cons.kind == 'salu' and (sd & cs): n = max(n, 1)
    if prod.kind == 'mfma':
        P = prod.passes
        t_ab = {4: 8, 8: 12}[P]; t_c_over = {4: 6, 8: 10}[P]; t_war = {4: 3, 8: 7}[P]
        if cons.kind == 'mfma':
            if pd & set(cons.srcA + cons.srcB): n = max(n, t_ab)
            if pd & set(cons.srcC):
                if cons.srcC == prod.dst and cons.passes == P: pass
                else: n = max(n, t_c_over)
            elif pd & cd:
                n = max(n, t_c_over)
        elif cons.kind in ('valu', 'vmem', 'ds'):
            if pd & (cs | cd): n = max(n, t_ab)
            if cons.kind == 'valu' and (set(prod.srcC) & cd): n = max(n, t_war)
    if prod.kind == 'vmem' and getattr(prod, 'store', False) and getattr(prod, 'wide', False):
        if cons.kind in ('valu', 'mfma') and (set(prod.data) & cd): n = max(n, 2)
        elif set(prod.data) & cd: n = max(n, 1)
    if prod.kind == 'salu' and (('s', 124) in pd) and cons.kind in ('vmem', 'ds') and ' lds' in cons.line: n = max(n, 1)
    return n

def fix(lines, lookback=24):
    out = []
    added = 0
    for l in lines:
        c = Ins(l)
        if not (c.is_label or c.empty):
            dist = 0; req = 0
            for p in reversed(out):
                if dist >= lookback: break
                if not (p.is_label or p.empty):
                    k = need(p, c) - dist
                    if k > req: req = k
                dist += p.states()
            while req > 0:
                k = min(req, 16)
                out.append(Ins(f"    s_nop {k-1}   ; hz"))
                req -= k; added += 1
        out.append(c)
    return [i.line for i in out], added
```

```python
import sys
from asmlib import *
import hz

EPOCH = 0x0
QB = 0x1000
GB = 0x9000
UB = 0x12000
FP = 0x1B000
AP = 0x5A000
APS = 2176
HP = 0xE2000
STAMP = 0x100000
WSSZ = 0x200000
L_R = 0x0
L_QI = 0x1000
L_CT = 0x1200
L_ML = 0x1300
L_X = 0x1400
L_O = 0x2000
L_KS = 0x4000
LDS_SZ = 0x4000
SX, SK, SV, SE, SL, SL2, SWS, SOUT = 4, 8, 12, 16, 20, 24, 28, 32
TAG = 36
S_SELLO, S_SELHI = 37, 38
def srd(n): return f"s[{n}:{n+3}]"
VK = 16
VV = 80
VL = 144
ACC = 168
TMP = 200
SC = 216
PP = 232
QF = 240

class Gen:
    def __init__(self, W=4, WV=4, K0=4, NV0=6, NE0=5, psleep=2, WL=None, stamps=False, spin=20000, nt=True, pad=0, klin=False, probe=None, probe_min=False, pre=None, mid=None, post=None, Wpost=None, xbar=False, split=False, P1=4, P2=9, Lgate='V'):
        self.a = Asm()
        self.ops = []
        self.W = W; self.WV = WV; self.K0 = K0; self.NV0 = NV0; self.WL = WL
        self.stamps = stamps
        self.nst = 0
        self.spin = spin
        self.NT = " nt" if nt else ""
        self.probe = probe; self.probe_min = probe_min
        if probe is not None: stamps = True; self.stamps = True
        self.klin = klin; self.xbar = xbar; self.split = split; self.P1 = P1; self.P2 = P2; self.Lgate = Lgate
        self.pad = pad; self.NE0 = NE0; self.psleep = psleep
        if pre is None:
            pre = [f"E{i}" for i in range(NE0)]; mid = [f"E{i}" for i in range(NE0, 9)]; post = [f"K{i}" for i in range(K0)]; Wpost = None
        self.pre, self.mid, self.post, self.Wpost = pre, mid, post, Wpost
        self.uid = 0
    def lab(self, s):
        self.uid += 1
        return f"L_{s}_{self.uid}"
    def vm(self, name, text):
        self.a("    " + text)
        self.ops.append(name)
    def after(self, name):
        i = len(self.ops) - 1 - self.ops[::-1].index(name)
        return len(self.ops) - 1 - i
    def wait(self, name, extra=0):
        n = self.after(name) + extra
        assert n <= 63
        self.a(f"    s_waitcnt vmcnt({n})")
    def window(self, w):
        self.a(f"    s_waitcnt vmcnt({w})")
    def stamp(self):
        if not self.stamps: return
        k = self.nst; self.nst += 1
        self.a(f"    s_memrealtime s[{70+2*k}:{71+2*k}]")
    def rb(self, dst, src, tmp):
        self.a(f"    v_cvt_pk_bf16_f32 v{tmp}, v{src}, v{src}")
        self.a(f"    v_lshlrev_b32 v{dst}, 16, v{tmp}")
    def rowsum16(self, v, op="v_add_f32", rs=(8, 4, 2, 1)):
        for r in rs:
            self.a(f"    {op}_dpp v{v}, v{v}, v{v} row_ror:{r} row_mask:0xf bank_mask:0xf")
    def x16(self, v, t, op):
        self.a(f"    v_mov_b32 v{t}, v{v}")
        self.a(f"    v_permlane16_swap_b32 v{v}, v{t}")
        self.a(f"    {op} v{v}, v{v}, v{t}")
    def x32(self, v, t, op):
        self.a(f"    v_mov_b32 v{t}, v{v}")
        self.a(f"    v_permlane32_swap_b32 v{v}, v{t}")
        self.a(f"    {op} v{v}, v{v}, v{t}")
    def transposed_mfma(self, rows, areg, first, accbase=ACC):
        a = self.a
        k = 0
        for jj in range(4):
            for half in range(2):
                j = 2 * jj + half
                T = TMP + 4 * (k % 4); k += 1
                sel = S_SELHI if half else S_SELLO
                for p in range(4):
                    a(f"    v_perm_b32 v{T+p}, v{rows[2*p+1]+jj}, v{rows[2*p]+jj}, s{sel}")
                c = "0" if first else f"v[{accbase+4*j}:{accbase+4*j+3}]"
                a(f"    v_mfma_f32_16x16x32_bf16 v[{accbase+4*j}:{accbase+4*j+3}], v[{areg}:{areg+3}], v[{T}:{T+3}], {c}")
    def usum_write(self, laddr):
        a = self.a
        for j in range(8):
            for b in range(2):
                a(f"    v_add_f32_dpp v{ACC+4*j+b}, v{ACC+4*j+2+b}, v{ACC+4*j+b} row_shl:8 row_mask:0xf bank_mask:0xf")
        a("    s_mov_b64 exec, 0xff")
        for j in range(8):
            a(f"    ds_write2_b32 v{laddr}, v{ACC+4*j}, v{ACC+4*j+1} offset0:{j} offset1:{64+j}")
        a("    s_mov_b64 exec, -1")
    def arrive(self, off, skip_label, n=7, t=TMP):
        a = self.a
        a(f"""    v_mov_b32 v{t}, {L_CT + off}
    v_mov_b32 v{t+1}, 1
    s_waitcnt lgkmcnt(0)
    s_mov_b64 exec, 1
    ds_add_rtn_u32 v{t+1}, v{t}, v{t+1}
    s_waitcnt lgkmcnt(0)
    v_readfirstlane_b32 s62, v{t+1}
    s_mov_b64 exec, -1
    s_cmp_lg_u32 s62, {n}
    s_cbranch_scc1 {skip_label}""")
    def poll_check(self, tagregs, reload_fn, label, sleep=1):
        a = self.a
        top = self.lab(label + "_chk"); ok = self.lab(label + "_ok")
        a(f"    s_mov_b32 s96, 0")
        a(f"{top}:")
        a(f"    v_cmp_eq_u32 vcc, s{TAG}, v{tagregs[0]}")
        for t in tagregs[1:]:
            a(f"    v_cmp_eq_u32 s[98:99], s{TAG}, v{t}")
            a(f"    s_nop 1")
            a(f"    s_and_b64 vcc, vcc, s[98:99]")
        a(f"    s_nop 1")
        a(f"    s_cmp_eq_u64 vcc, exec")
        a(f"    s_cbranch_scc1 {ok}")
        a(f"    s_add_u32 s96, s96, 1")
        a(f"    s_cmp_gt_u32 s96, {self.spin}")
        a(f"    s_cbranch_scc1 {ok}")
        if sleep: a(f"    s_sleep {sleep}")
        reload_fn()
        a(f"    s_waitcnt vmcnt(0)")
        a(f"    s_branch {top}")
        a(f"{ok}:")

    def poll_masked(self, tagregs, reload_fn, label, sleep=1):
        a = self.a
        top = self.lab(label + "_chk"); ok = self.lab(label + "_ok")
        a(f"    s_mov_b32 s96, 0")
        a(f"{top}:")
        a(f"    v_cmp_ne_u32 vcc, s{TAG}, v{tagregs[0]}")
        for t in tagregs[1:]:
            a(f"    v_cmp_ne_u32 s[98:99], s{TAG}, v{t}")
            a(f"    s_nop 1")
            a(f"    s_or_b64 vcc, vcc, s[98:99]")
        a(f"    s_nop 1")
        a(f"    s_cmp_eq_u64 vcc, 0")
        a(f"    s_cbranch_scc1 {ok}")
        a(f"    s_add_u32 s96, s96, 1")
        a(f"    s_cmp_gt_u32 s96, {self.spin}")
        a(f"    s_cbranch_scc1 {ok}")
        if sleep: a(f"    s_sleep {sleep}")
        a(f"    s_mov_b64 exec, vcc")
        reload_fn()
        a(f"    s_mov_b64 exec, -1")
        a(f"    s_waitcnt vmcnt(0)")
        a(f"    s_branch {top}")
        a(f"{ok}:")

    def build(self):
        a = self.a; NT = self.NT
        W = self.W
        a(f"""
    s_cmp_ge_u32 s2, 256
    s_cbranch_scc1 L_end
""")
        self.stamp()
        if self.pad:
            a("    s_memrealtime s[100:101]")
        a(f"""
    s_load_dwordx4 s[40:43], s[0:1], 0
    s_load_dwordx4 s[44:47], s[0:1], 16
    s_load_dwordx2 s[48:49], s[0:1], 32
    s_load_dwordx4 s[52:55], s[0:1], 48
    s_load_dwordx4 s[56:59], s[0:1], 64
    s_load_dwordx2 s[60:61], s[0:1], 88
    v_lshrrev_b32 v1, 6, v0
    v_and_b32 v0, 63, v0
    v_readfirstlane_b32 s3, v1
    v_mov_b32 v1, 0
    v_lshlrev_b32 v12, 2, v0
    s_cmp_lg_u32 s3, 0
    s_cbranch_scc1 L_noz
    s_mov_b64 exec, 0xffff
    ds_write_b32 v12, v1 offset:{L_CT}
    s_mov_b64 exec, -1
    s_waitcnt lgkmcnt(0)
L_noz:
    {"" if self.xbar else "s_barrier"}
    v_lshrrev_b32 v2, 4, v0            ; g
    v_and_b32 v3, 15, v0               ; n
    v_lshrrev_b32 v4, 3, v0            ; q
    v_and_b32 v5, 7, v0                ; c
    v_lshrrev_b32 v6, 5, v0
    v_mul_u32_u24 v6, 1152, v6
    v_and_b32 v7, 31, v0
    v_lshl_add_u32 v6, v7, 4, v6
    v_cmp_gt_u32 vcc, 8, v7
    v_add_u32 v7, 1024, v6
    v_mov_b32 v8, 0x7fff0000
    v_cndmask_b32 v7, v8, v7, vcc
    v_and_b32 v8, 1, v0
    v_mul_u32_u24 v8, 1152, v8         ; b*1152
    s_mul_i32 s62, s3, 144
    v_add_u32 v8, s62, v8              ; + 144w
    v_bfe_u32 v9, v0, 1, 1             ; u
    v_lshl_add_u32 v10, v2, 5, v8      ; + 32g
    v_lshl_add_u32 v10, v9, 4, v10
    v_lshl_add_u32 v11, v2, 2, v8      ; + 4g
    v_lshl_add_u32 v11, v9, 1, v11
    s_and_b32 s69, s2, 7               ; x
    s_lshr_b32 s39, s2, 3              ; j
    s_mul_i32 s64, s69, 26
    s_add_u32 s64, s64, s39            ; tE
    s_mov_b32 s65, 8192                ; stride
    s_mov_b32 s66, s64                 ; cgE
    s_mov_b32 s67, {QB}
    s_mov_b32 s68, {2048*8}
    s_waitcnt lgkmcnt(0)
    s_load_dword s63, s[60:61], {EPOCH}
    s_mov_b32 s{SE}, s46
    s_mov_b32 s{SE+1}, s47
    s_mov_b32 s{SE+2}, 4718592
    s_mov_b32 s{SE+3}, 0x20000
    s_mov_b32 s100, 1
    s_cmp_lt_u32 s39, 26
    s_cbranch_scc1 L_roleE_own
    s_mul_i32 s64, s69, 6
    s_add_u32 s64, s64, s39
    s_sub_u32 s64, s64, 26
    s_cmp_ge_u32 s64, {26 if self.split else 0}
    s_cbranch_scc1 L_roleE_none
    s_lshl_b32 s64, s64, 3
    s_add_u32 s64, s64, 3
    s_mov_b32 s66, s64
    s_mov_b32 s100, 3
    s_branch L_roleE_sel
L_roleE_own:
    s_and_b32 s62, s64, 7
    s_cmp_eq_u32 s62, 3
    s_cselect_b32 s100, {2 if self.split else 1}, 1
L_roleE_sel:
    s_cmp_lt_u32 s64, 64
    s_cbranch_scc1 L_roleE_mask
    s_mov_b32 s{SE}, s52
    s_mov_b32 s{SE+1}, s53
    s_mov_b32 s{SE+2}, 5308416
    s_mov_b32 s65, 9216
    s_sub_u32 s66, s64, 64
    s_mov_b32 s67, {GB}
    s_mov_b32 s68, {2304*8}
    s_cmp_lt_u32 s64, 136
    s_cbranch_scc1 L_roleE_mask
    s_mov_b32 s{SE}, s54
    s_mov_b32 s{SE+1}, s55
    s_sub_u32 s66, s64, 136
    s_mov_b32 s67, {UB}
L_roleE_mask:
    s_cmp_eq_u32 s100, 1
    s_cbranch_scc1 L_roleE_done
    s_lshr_b32 s62, s3, 2
    s_add_u32 s62, s62, 2              ; 2 / 3
    s_cmp_eq_u32 s62, s100
    s_cbranch_scc1 L_roleE_done
    s_mov_b32 s{SE+2}, 0
    s_branch L_roleE_done
L_roleE_none:
    s_mov_b32 s100, 0
    s_mov_b32 s{SE+2}, 0
    s_mov_b32 s66, 0
L_roleE_done:
    s_lshr_b32 s97, s64, 3
    s_mov_b32 s101, 0
    s_mov_b32 s{SX}, s40
    s_mov_b32 s{SX+1}, s41
    s_mov_b32 s{SX+2}, 2304
    s_mov_b32 s{SX+3}, 0x20000
""")
        self.vm("X1", f"buffer_load_dwordx4 v[{VV}:{VV+3}], v6, {srd(SX)}, 0 offen")
        self.vm("X2", f"buffer_load_dwordx4 v[{VV+4}:{VV+7}], v6, {srd(SX)}, 0 offen offset:512")
        self.vm("X3", f"buffer_load_dwordx4 v[{VV+8}:{VV+11}], v7, {srd(SX)}, 0 offen")
        if self.xbar: a("    s_barrier")
        a(f"""
    s_mul_i32 s62, s3, 72
    v_lshl_add_u32 v12, v4, 3, s62
    v_mul_lo_u32 v12, v12, s65
    s_lshl_b32 s69, s66, 7
    v_lshlrev_b32 v14, 4, v5
    v_add3_u32 v12, v12, v14, s69
    s_add_u32 s62, s62, 64
    v_add_u32 v13, s62, v4
    v_mul_lo_u32 v13, v13, s65
    v_add3_u32 v13, v13, v14, s69
    s_mov_b32 s62, 0
""")
        ER = [VL + 4 * i for i in range(6)] + [QF, QF + 4, QF + 8]
        def eload(i):
            if i < 8:
                a(f"    s_mul_i32 s62, s65, {i}")
                self.vm(f"E{i}", f"buffer_load_dwordx4 v[{ER[i]}:{ER[i]+3}], v1, {srd(SE)}, s62 offen{NT}")
            else:
                self.vm("E8", f"buffer_load_dwordx4 v[{ER[8]}:{ER[8]+3}], v13, {srd(SE)}, 0 offen{NT}")
        a("    v_mov_b32 v1, v12")
        a(f"""
    s_mov_b32 s{SK}, s42
    s_mov_b32 s{SK+1}, s43
    s_mov_b32 s{SK+2}, 0x2000000
    s_mov_b32 s{SK+3}, 0x20000
    s_lshl_b32 s47, s2, 17
    s_lshl_b32 s46, s3, 14
    s_add_u32 s47, s47, s46
""")
        if not self.klin:
            a(f"""
    v_and_b32 v14, 3, v3
    v_lshlrev_b32 v14, 2, v14
    v_lshrrev_b32 v15, 2, v3
    v_add_u32 v14, v14, v15
    v_lshlrev_b32 v14, 8, v14
    v_lshl_add_u32 v14, v2, 4, v14
""")
        else:
            a("    v_lshlrev_b32 v14, 4, v0")
        korder = [(t, i) for t in range(4) for i in range(4)]
        def kload(idx):
            t, i = korder[idx]
            a(f"    s_add_u32 s62, s47, {t*4096}")
            koff = 1024 * i if self.klin else 64 * i
            self.vm(f"K{idx}", f"buffer_load_dwordx4 v[{VK+16*t+4*i}:{VK+16*t+4*i+3}], v14, {srd(SK)}, s62 offen offset:{koff}{NT}")
        def issue(nm):
            (eload if nm[0] == "E" else kload)(int(nm[1:]))
        for nm in self.pre: issue(nm)
        a(f"""
    s_mov_b32 s{SV}, s44
    s_mov_b32 s{SV+1}, s45
    s_mov_b32 s{SV+2}, 0x2000000
    s_mov_b32 s{SV+3}, 0x20000
    v_lshlrev_b32 v15, 4, v0
""")
        a(f"""
    s_mov_b32 s{SWS}, s60
    s_mov_b32 s{SWS+1}, s61
    s_mov_b32 s{SWS+2}, {WSSZ}
    s_mov_b32 s{SWS+3}, 0x20000
    s_mov_b32 s{SOUT}, s58
    s_mov_b32 s{SOUT+1}, s59
    s_mov_b32 s{SOUT+2}, 2304
    s_mov_b32 s{SOUT+3}, 0x20000
    s_mov_b32 s{S_SELLO}, 0x05040100
    s_mov_b32 s{S_SELHI}, 0x07060302
    ; role L : wg<144 wo (kvh=wg/9,cg=wg%9) ; 148<=wg<256 down (kr=(wg-148)/9) ; else none
    s_mov_b32 s{SL}, s48
    s_mov_b32 s{SL+1}, s49
    s_mov_b32 s{SL+2}, 4718592
    s_mov_b32 s{SL+3}, 0x20000
    s_mov_b32 s{SL2}, s48
    s_mov_b32 s{SL2+1}, s49
    s_mov_b32 s{SL2+2}, 0
    s_mov_b32 s{SL2+3}, 0x20000
    s_and_b32 s45, s2, 7
    s_lshr_b32 s46, s2, 3
    s_mov_b32 s40, 0
    s_mov_b32 s39, 4
    s_mul_i32 s44, s45, 18
    s_add_u32 s44, s44, s46
    s_cmp_lt_u32 s46, 18
    s_cbranch_scc1 L_roleL_a
    s_mul_i32 s44, s45, 14
    s_add_u32 s44, s44, s46
    s_sub_u32 s44, s44, 18
    s_cmp_lt_u32 s44, 108
    s_cbranch_scc1 L_roleL_dn
    s_mov_b32 s40, 2
    s_mov_b32 s{SL+2}, 0
    s_mov_b32 s44, 0
    s_branch L_roleL_a
L_roleL_dn:
    s_mov_b32 s40, 1
    s_mov_b32 s39, 6
    s_mov_b32 s{SL}, s56
    s_mov_b32 s{SL+1}, s57
    s_mov_b32 s{SL+2}, 5308416
    s_mov_b32 s{SL2}, s56
    s_mov_b32 s{SL2+1}, s57
    s_mov_b32 s{SL2+2}, 5308416
L_roleL_a:
    s_mul_hi_u32 s45, s44, 0x1C71C71D   ; /9
    s_mul_i32 s46, s45, 9
    s_sub_u32 s41, s44, s46             ; cg
    s_cmp_eq_u32 s40, 1
    s_cselect_b32 s46, 16, 0
    s_add_u32 s42, s45, s46             ; k slot
    s_cmp_eq_u32 s40, 1
    s_movk_i32 s46, 256
    s_cselect_b32 s46, 384, s46
    s_mul_i32 s43, s45, s46
""")
        self.wait("X3")
        self.stamp()
        for nm in self.mid: issue(nm)
        a(f"""
    ds_write_b128 v6, v[{VV}:{VV+3}] offset:{L_X}
    ds_write_b128 v6, v[{VV+4}:{VV+7}] offset:{L_X + 512}
    v_and_b32 v8, 31, v0
    v_cmp_gt_u32 vcc, 8, v8
    s_mov_b64 exec, vcc
    ds_write_b128 v6, v[{VV+8}:{VV+11}] offset:{L_X + 1024}
    s_mov_b64 exec, -1
    s_waitcnt lgkmcnt(0)
    ds_read_b128 v[{VV+12}:{VV+15}], v10 offset:{L_X}
    ds_read_u16 v{VV+16}, v11 offset:{L_X + 128}
""")
        X = VV
        u0 = ACC
        for r in range(12):
            a(f"    v_lshlrev_b32 v{u0+2*r}, 16, v{X+r}")
            a(f"    v_and_b32 v{u0+2*r+1}, 0xffff0000, v{X+r}")
        a(f"    v_add_f32 v{TMP}, v{u0}, v{u0+1}")
        a(f"    v_add_f32 v{TMP+1}, v{u0+2}, v{u0+3}")
        for r in range(4, 24, 2):
            a(f"    v_add_f32 v{TMP}, v{TMP}, v{u0+r}")
            a(f"    v_add_f32 v{TMP+1}, v{TMP+1}, v{u0+r+1}")
        a(f"    v_add_f32 v{TMP}, v{TMP}, v{TMP+1}")
        self.rowsum16(TMP)
        self.x16(TMP, TMP+1, "v_add_f32")
        a(f"    v_mul_f32 v{TMP}, 0x3ae38e39, v{TMP}      ; /576 -> mean")
        a(f"    v_and_b32 v{TMP+2}, 31, v0")
        a(f"    v_cmp_gt_u32 vcc, 8, v{TMP+2}")
        for r in range(24):
            a(f"    v_sub_f32 v{u0+r}, v{u0+r}, v{TMP}")
        for r in range(16, 24):
            a(f"    v_cndmask_b32 v{u0+r}, 0, v{u0+r}, vcc")
        a(f"    v_mul_f32 v{TMP+2}, v{u0}, v{u0}")
        a(f"    v_mul_f32 v{TMP+3}, v{u0+1}, v{u0+1}")
        for r in range(2, 24, 2):
            a(f"    v_fmac_f32 v{TMP+2}, v{u0+r}, v{u0+r}")
            a(f"    v_fmac_f32 v{TMP+3}, v{u0+r+1}, v{u0+r+1}")
        a(f"    v_add_f32 v{TMP+2}, v{TMP+2}, v{TMP+3}")
        self.rowsum16(TMP+2)
        self.x16(TMP+2, TMP+3, "v_add_f32")
        a(f"    v_mul_f32 v{TMP+2}, 0x3ae38e39, v{TMP+2}   ; var")
        self.rb(TMP, TMP, TMP+4)
        self.rb(TMP+2, TMP+2, TMP+4)
        a(f"    v_add_f32 v{TMP+2}, 0x3727c5ac, v{TMP+2}   ; + 1e-5")
        self.rb(TMP+2, TMP+2, TMP+4)
        a(f"    v_sqrt_f32 v{TMP+2}, v{TMP+2}")
        self.rb(TMP+2, TMP+2, TMP+4)
        a(f"""
    v_readlane_b32 s48, v{TMP}, 0
    v_readlane_b32 s49, v{TMP}, 32
    v_readlane_b32 s50, v{TMP+2}, 0
    v_readlane_b32 s51, v{TMP+2}, 32
    v_and_b32 v{TMP+4}, 1, v0
    v_cmp_eq_u32 vcc, 1, v{TMP+4}
    v_mov_b32 v{TMP}, s48
    v_mov_b32 v{TMP+1}, s49
    v_mov_b32 v{TMP+2}, s50
    v_mov_b32 v{TMP+3}, s51
    v_cndmask_b32 v{TMP}, v{TMP}, v{TMP+1}, vcc
    v_cndmask_b32 v{TMP+2}, v{TMP+2}, v{TMP+3}, vcc
    v_rcp_f32 v{TMP+3}, v{TMP+2}
""")
        a("    s_waitcnt lgkmcnt(0)")
        m_, sd_, r_ = TMP, TMP+2, TMP+3
        def norm_pair(lo, hi, dst, t):
            a(f"    {lo[0]} v{t}, {lo[1]}")
            a(f"    {hi[0]} v{t+1}, {hi[1]}")
            a(f"    v_sub_f32 v{t}, v{t}, v{m_}")
            a(f"    v_sub_f32 v{t+1}, v{t+1}, v{m_}")
            a(f"    v_cvt_pk_bf16_f32 v{t+2}, v{t}, v{t+1}")
            a(f"    v_lshlrev_b32 v{t}, 16, v{t+2}")
            a(f"    v_and_b32 v{t+1}, 0xffff0000, v{t+2}")
            a(f"    v_mul_f32 v{t+2}, v{t}, v{r_}")
            a(f"    v_mul_f32 v{t+3}, v{t+1}, v{r_}")
            a(f"    v_fma_f32 v{t+4}, -v{t+2}, v{sd_}, v{t}")
            a(f"    v_fma_f32 v{t+5}, -v{t+3}, v{sd_}, v{t+1}")
            a(f"    v_fma_f32 v{t+2}, v{t+4}, v{r_}, v{t+2}")
            a(f"    v_fma_f32 v{t+3}, v{t+5}, v{r_}, v{t+3}")
            a(f"    v_cvt_pk_bf16_f32 v{dst}, v{t+2}, v{t+3}")
        for p in range(4):
            norm_pair(("v_lshlrev_b32", f"16, v{X+12+p}"), ("v_and_b32", f"0xffff0000, v{X+12+p}"), 6 + p, ACC + 6 * (p % 4))
        norm_pair(("v_lshlrev_b32", f"16, v{X+16}"), ("v_mov_b32", f"v{m_}"), 10, ACC + 24)
        a(f"    v_and_b32 v10, 0xffff, v10")
        a(f"    v_mov_b32 v11, 0")
        a(f"""
    s_waitcnt lgkmcnt(0)
    s_mul_i32 s{TAG}, s63, 0x9E3779B1
    s_add_u32 s{TAG}, s{TAG}, 0x7F4A7C15
""")
        self.stamp()
        for nm in self.post:
            issue(nm)
            if self.Wpost is not None: self.window(self.Wpost)
        a(f"""
    s_cmp_eq_u32 s100, 0
    s_cbranch_scc1 L_E_skip
""")
        self.wait("E8")
        self.stamp()
        self.transposed_mfma(ER[:8], 6, first=True)
        a(f"    v_mov_b32 v{SC+1}, 0")
        a(f"    v_mov_b32 v{SC+3}, 0")
        for j in range(8):
            jj, half = j >> 1, j & 1
            T = SC + 2 * (j & 1)
            if half == 0:
                a(f"    v_and_b32 v{T}, 0xffff, v{ER[8]+jj}")
            else:
                a(f"    v_lshrrev_b32 v{T}, 16, v{ER[8]+jj}")
            a(f"    v_mfma_f32_16x16x16_bf16 v[{ACC+4*j}:{ACC+4*j+3}], v[10:11], v[{T}:{T+1}], v[{ACC+4*j}:{ACC+4*j+3}]")
        a(f"""
    s_lshl_b32 s62, s3, 9
    v_lshlrev_b32 v12, 5, v5
    v_add_u32 v12, s62, v12
""")
        self.usum_write(12)
        self.arrive(0, "L_E_skip")
        a("    v_lshlrev_b32 v12, 3, v0")
        for w in range(8):
            a(f"    ds_read_b64 v[{ACC+2*w}:{ACC+2*w+1}], v12 offset:{L_R + w*512}")
        a("    s_waitcnt lgkmcnt(0)")
        for w in range(1, 8):
            a(f"    v_add_f32 v{ACC}, v{ACC}, v{ACC+2*w}")
            a(f"    v_add_f32 v{ACC+1}, v{ACC+1}, v{ACC+2*w+1}")
        a(f"""
    s_cmp_eq_u32 s100, 1
    s_cbranch_scc1 L_E_pubfinal
    s_cmp_eq_u32 s100, 3
    s_cbranch_scc1 L_E_pubpart
    v_mov_b32 v8, v{ACC}
    v_mov_b32 v9, v{ACC+1}
    s_mov_b32 s101, 1
    s_branch L_E_skip
L_E_pubpart:
    v_mov_b32 v{TMP}, v{ACC}
    v_mov_b32 v{TMP+1}, s{TAG}
    v_mov_b32 v{TMP+2}, v{ACC+1}
    v_mov_b32 v{TMP+3}, s{TAG}
    s_lshl_b32 s62, s97, 10
    s_add_u32 s62, s62, {HP}
    v_lshlrev_b32 v12, 4, v0
    buffer_store_dwordx4 v[{TMP}:{TMP+3}], v12, {srd(SWS)}, s62 offen sc1
    s_branch L_E_skip
L_E_pubfinal:
    v_cvt_pk_bf16_f32 v{TMP}, v{ACC}, v{ACC+1}
    v_mov_b32 v{TMP+1}, s{TAG}
    v_lshrrev_b32 v12, 5, v0
    v_mul_lo_u32 v12, v12, s68
    v_and_b32 v13, 31, v0
    v_lshl_add_u32 v12, v13, 3, v12
    s_lshl_b32 s62, s66, 8
    s_add_u32 s62, s62, s67
    buffer_store_dwordx2 v[{TMP}:{TMP+1}], v12, {srd(SWS)}, s62 offen sc1
L_E_skip:
""")
        self.stamp()
        nk = sum(1 for nm in self.pre + self.mid + self.post if nm[0] == "K")
        KW, KR = SC + 14, SC + 15
        self.ktile = 0
        def ktrans(t):
            for i in range(4):
                a(f"    ds_write_b128 v{KW}, v[{VK+16*t+4*i}:{VK+16*t+4*i+3}] offset:{1088*i}")
            for i in range(4):
                a(f"    ds_read_b128 v[{VK+16*t+4*i}:{VK+16*t+4*i+3}], v{KR} offset:{64*i}")
        if self.klin:
            a(f"""
    s_mul_i32 s62, s3, 4352
    s_add_u32 s62, s62, {L_KS}
    v_mul_u32_u24 v{KW}, 272, v2
    v_lshl_add_u32 v{KW}, v3, 4, v{KW}
    v_add_u32 v{KW}, s62, v{KW}
    v_and_b32 v{KR}, 3, v3
    v_lshlrev_b32 v{KR}, 2, v{KR}
    v_lshrrev_b32 v12, 2, v3
    v_add_u32 v{KR}, v{KR}, v12
    v_mul_u32_u24 v{KR}, 272, v{KR}
    v_lshl_add_u32 v{KR}, v2, 4, v{KR}
    v_add_u32 v{KR}, s62, v{KR}
""")
        HPR = QF + 12
        def hpload():
            a(f"    buffer_load_dwordx4 v[{HPR}:{HPR+3}], v10, {srd(SWS)}, s99 offen sc1")
        for k in range(nk, 16):
            if self.split and k == self.P1:
                a(f"""
    s_cmp_eq_u32 s101, 0
    s_cbranch_scc1 L_hp1
    s_lshl_b32 s99, s97, 10
    s_add_u32 s99, s99, {HP}
    v_lshlrev_b32 v10, 4, v0
""")
                hpload()
                a("L_hp1:")
                self.hp_mark = len(self.ops)
            if self.split and k == self.P2:
                n = len(self.ops) - self.hp_mark
                a(f"""
    s_cmp_eq_u32 s101, 0
    s_cbranch_scc1 L_hp2
    s_waitcnt vmcnt({n})
    s_mov_b32 s96, 0
L_hp_chk:
    v_cmp_eq_u32 vcc, s{TAG}, v{HPR+1}
    v_cmp_eq_u32 s[62:63], s{TAG}, v{HPR+3}
    s_nop 1
    s_and_b64 vcc, vcc, s[62:63]
    s_nop 1
    s_cmp_eq_u64 vcc, exec
    s_cbranch_scc1 L_hp_ok
    s_add_u32 s96, s96, 1
    s_cmp_gt_u32 s96, {self.spin}
    s_cbranch_scc1 L_hp_ok
    s_sleep 1
    buffer_load_dwordx4 v[{HPR}:{HPR+3}], v10, {srd(SWS)}, s99 offen sc1
    s_waitcnt vmcnt(0)
    s_branch L_hp_chk
L_hp_ok:
    v_add_f32 v8, v8, v{HPR}
    v_add_f32 v9, v9, v{HPR+2}
    v_cvt_pk_bf16_f32 v8, v8, v9
    v_mov_b32 v9, s{TAG}
    v_lshrrev_b32 v12, 5, v0
    v_mul_lo_u32 v12, v12, s68
    v_and_b32 v13, 31, v0
    v_lshl_add_u32 v12, v13, 3, v12
    s_lshl_b32 s62, s66, 8
    s_add_u32 s62, s62, s67
    buffer_store_dwordx2 v[8:9], v12, {srd(SWS)}, s62 offen sc1
L_hp2:
""")
            kload(k)
            if W is not None:
                self.window(W)
                while self.klin and self.ktile < 4 and f"K{4*self.ktile+3}" in self.ops and self.after(f"K{4*self.ktile+3}") >= W:
                    ktrans(self.ktile); self.ktile += 1
        a(f"""
    s_lshr_b32 s62, s2, 7
    s_lshl_b32 s62, s62, 14
    s_bfe_u32 s64, s2, 0x40003
    s_lshl_b32 s64, s64, 10
    s_add_u32 s62, s62, s64
    s_add_u32 s52, s62, {QB}
    s_lshl_b32 s62, s39, 3
    s_mul_i32 s62, s62, s3
    s_add_u32 s62, s62, s43
    v_mul_lo_u32 v14, v4, s39
    v_add_u32 v14, s62, v14
    v_mul_u32_u24 v14, 1152, v14
    s_lshl_b32 s62, s41, 7
    v_lshl_add_u32 v14, v5, 4, v14
    v_add_u32 v14, s62, v14
    s_movk_i32 s53, 4608
""")
        self.arrive(4, "L_q_notme", n=0)
        qload = f"buffer_load_dwordx4 v[{QF}:{QF+3}], v15, {srd(SWS)}, s52 offen sc1"
        a("    " + qload)
        a("    s_waitcnt vmcnt(0)")
        self.poll_check([QF+1, QF+3], lambda: a("    " + qload), "q")
        a(f"""
    v_lshlrev_b32 v12, 3, v0
    ds_write2_b32 v12, v{QF}, v{QF+2} offset0:{L_QI//4 % 256} offset1:{(L_QI//4 + 1) % 256}
""" if False else f"""
    v_lshlrev_b32 v12, 3, v0
    v_add_u32 v12, {L_QI}, v12
    ds_write2_b32 v12, v{QF}, v{QF+2} offset0:0 offset1:1
    v_mov_b32 v12, {L_CT + 8}
    v_mov_b32 v13, 1
    s_waitcnt lgkmcnt(0)
    s_mov_b64 exec, 1
    ds_write_b32 v12, v13
    s_mov_b64 exec, -1
L_q_notme:
""")
        def vload(idx):
            a(f"    s_add_u32 s62, s47, {(idx//4)*4096}")
            self.vm(f"V{idx}", f"buffer_load_dwordx4 v[{VV+4*idx}:{VV+4*idx+3}], v15, {srd(SV)}, s62 offen offset:{1024*(idx%4)}{NT}")
        def lloads():
            for i in range(6):
                if i < 4:
                    self.vm(f"L{i}", f"buffer_load_dwordx4 v[{VL+4*i}:{VL+4*i+3}], v14, {srd(SL)}, 0 offen offset:{1152*i}{NT}")
                else:
                    self.vm(f"L{i}", f"buffer_load_dwordx4 v[{VL+4*i}:{VL+4*i+3}], v14, {srd(SL2)}, s53 offen offset:{1152*(i-4)}{NT}")
                if self.WL is not None: self.window(self.WL)
        NV0 = self.NV0
        for k in range(NV0):
            vload(k)
        self.wait("K15")
        self.stamp()
        while self.klin and self.ktile < 4:
            ktrans(self.ktile); self.ktile += 1
        a(f"""
    v_mov_b32 v12, {L_CT + 8}
    s_mov_b32 s96, 0
L_qwait:
    ds_read_b32 v13, v12
    s_waitcnt lgkmcnt(0)
    v_readfirstlane_b32 s62, v13
    s_cmp_lg_u32 s62, 0
    s_cbranch_scc1 L_qready
    s_add_u32 s96, s96, 1
    s_cmp_gt_u32 s96, {self.spin * 20}
    s_cbranch_scc1 L_qready
    s_sleep 1
    s_branch L_qwait
L_qready:
    v_and_b32 v13, 1, v0
    v_lshlrev_b32 v13, 8, v13
    v_lshl_add_u32 v13, v2, 4, v13
""")
        for i in range(4):
            a(f"    ds_read_b128 v[{QF+4*i}:{QF+4*i+3}], v13 offset:{L_QI + 64*i}")
        a("    s_waitcnt lgkmcnt(0)")
        for i in range(4):
            for t in range(4):
                c = "0" if i == 0 else f"v[{SC+4*t}:{SC+4*t+3}]"
                a(f"    v_mfma_f32_16x16x32_bf16 v[{SC+4*t}:{SC+4*t+3}], v[{VK+16*t+4*i}:{VK+16*t+4*i+3}], v[{QF+4*i}:{QF+4*i+3}], {c}")
        for k in range(NV0, min(16, NV0 + 2)):
            vload(k)
        a("    s_mov_b32 s62, 0x3db504f3      ; 128^-0.5")
        for p in range(8):
            r = SC + 2 * p
            t = TMP + (p % 4)
            a(f"    v_cvt_pk_bf16_f32 v{t}, v{r}, v{r+1}")
            a(f"    v_lshlrev_b32 v{r}, 16, v{t}")
            a(f"    v_and_b32 v{r+1}, 0xffff0000, v{t}")
            a(f"    v_mul_f32 v{r}, s62, v{r}")
            a(f"    v_mul_f32 v{r+1}, s62, v{r+1}")
            a(f"    v_cvt_pk_bf16_f32 v{t}, v{r}, v{r+1}")
            a(f"    v_lshlrev_b32 v{r}, 16, v{t}")
            a(f"    v_and_b32 v{r+1}, 0xffff0000, v{t}")
        M = 12; LS = 13
        a(f"    v_max3_f32 v{M}, v{SC}, v{SC+1}, v{SC+2}")
        for r in range(3, 15, 2):
            a(f"    v_max3_f32 v{M}, v{M}, v{SC+r}, v{SC+r+1}")
        a(f"    v_max_f32 v{M}, v{M}, v{SC+15}")
        self.x16(M, TMP, "v_max_f32")
        self.x32(M, TMP, "v_max_f32")
        a("    s_mov_b32 s62, 0x3fb8aa3b     ; log2(e)")
        for r in range(16):
            a(f"    v_sub_f32 v{SC+r}, v{SC+r}, v{M}")
        for r in range(16):
            a(f"    v_mul_f32 v{SC+r}, s62, v{SC+r}")
        for r in range(16):
            a(f"    v_exp_f32 v{SC+r}, v{SC+r}")
        a(f"    v_add_f32 v{LS}, v{SC}, v{SC+1}")
        for r in range(2, 16):
            a(f"    v_add_f32 v{LS}, v{LS}, v{SC+r}")
        for p in range(8):
            a(f"    v_cvt_pk_bf16_f32 v{PP+p}, v{SC+2*p}, v{SC+2*p+1}")
        self.x16(LS, TMP, "v_add_f32")
        self.x32(LS, TMP, "v_add_f32")
        a(f"""
    s_lshl_b32 s62, s3, 4
    s_add_u32 s62, s62, {L_ML}
    v_lshl_add_u32 v{TMP}, v0, 3, s62
    s_mov_b64 exec, 3
    ds_write2_b32 v{TMP}, v{M}, v{LS} offset0:0 offset1:1
    s_mov_b64 exec, -1
""")
        self.stamp()
        WV = self.WV
        for k in range(min(16, NV0 + 2), 16):
            vload(k)
            if WV is not None: self.window(WV)
        HG = VK + 40
        HA = VK + 52
        def hload():
            a(f"    buffer_load_dwordx4 v[{HG}:{HG+3}], v{HA}, {srd(SWS)}, s54 offen sc1")
            a(f"    buffer_load_dwordx2 v[{HG+4}:{HG+5}], v{HA}, {srd(SWS)}, s54 offen offset:16 sc1")
            a(f"    buffer_load_dwordx4 v[{HG+6}:{HG+9}], v{HA}, {srd(SWS)}, s55 offen sc1")
            a(f"    buffer_load_dwordx2 v[{HG+10}:{HG+11}], v{HA}, {srd(SWS)}, s55 offen offset:16 sc1")
        a(f"""
    s_cmp_lg_u32 s40, 1
    s_cbranch_scc1 L_noh1
    v_and_b32 v{TMP}, 1, v0
    v_mul_u32_u24 v{TMP}, 2304, v{TMP}
    v_bfe_u32 v{TMP+1}, v0, 1, 1
    v_lshl_add_u32 v{TMP+1}, v2, 1, v{TMP+1}      ; 2g+u
    v_mul_u32_u24 v{TMP+1}, 3, v{TMP+1}
    v_add_u32 v{TMP}, v{TMP}, v{TMP+1}
    s_sub_u32 s62, s42, 16
    s_mul_i32 s62, s62, 192
    s_mul_i32 s64, s3, 24
    s_add_u32 s62, s62, s64
    v_add_u32 v{TMP}, s62, v{TMP}
    v_lshlrev_b32 v{HA}, 3, v{TMP}
    s_mov_b32 s54, {GB}
    s_mov_b32 s55, {UB}
""")
        hload()
        a("L_noh1:")
        a(f"""
    v_mov_b32 v{TMP}, {L_CT + 20}
    v_mov_b32 v{TMP+1}, 1
    s_mov_b64 exec, 1
    ds_add_u32 v{TMP}, v{TMP+1}
    s_mov_b64 exec, -1
""")
        self.wait("V7")
        self.transposed_mfma([VV + 4 * i for i in range(8)], PP, first=True)
        self.stamp()
        self.wait("V15")
        self.stamp()
        self.transposed_mfma([VV + 32 + 4 * i for i in range(8)], PP + 4, first=False)
        a(f"""
    s_lshl_b32 s62, s3, 10
    s_add_u32 s62, s62, {L_O}
    v_lshl_add_u32 v12, v3, 5, s62
    s_mov_b64 exec, 0xffff
""")
        for j in range(8):
            a(f"    ds_write2_b32 v12, v{ACC+4*j}, v{ACC+4*j+1} offset0:{j} offset1:{128+j}")
        a("    s_mov_b64 exec, -1")
        self.arrive(12, "L_ap_done")
        a(f"""
    v_lshrrev_b32 v12, 5, v0
    v_lshlrev_b32 v12, 3, v12           ; h*8
    v_lshlrev_b32 v13, 4, v0            ; l*16
""")
        for w in range(8):
            a(f"    ds_read_b64 v[{TMP+2*w}:{TMP+2*w+1}], v12 offset:{L_ML + 16*w}")
        OB = VV
        for w in range(8):
            a(f"    ds_read_b128 v[{OB+4*w}:{OB+4*w+3}], v13 offset:{L_O + 1024*w}")
        a("    s_waitcnt lgkmcnt(8)")
        a(f"    v_max3_f32 v12, v{TMP}, v{TMP+2}, v{TMP+4}")
        a(f"    v_max3_f32 v12, v12, v{TMP+6}, v{TMP+8}")
        a(f"    v_max3_f32 v12, v12, v{TMP+10}, v{TMP+12}")
        a(f"    v_max_f32 v12, v12, v{TMP+14}")
        a("    s_mov_b32 s64, 0x3fb8aa3b")
        for w in range(8):
            a(f"    v_sub_f32 v{TMP+2*w}, v{TMP+2*w}, v12")
        for w in range(8):
            a(f"    v_mul_f32 v{TMP+2*w}, s64, v{TMP+2*w}")
        for w in range(8):
            a(f"    v_exp_f32 v{TMP+2*w}, v{TMP+2*w}")
        a("    s_waitcnt lgkmcnt(0)")
        R = SC
        for d in range(4):
            a(f"    v_mul_f32 v{R+2*d}, v{TMP}, v{OB+d}")
        a(f"    v_mul_f32 v{R+10}, v{TMP}, v{TMP+1}")
        for w in range(1, 8):
            for d in range(4):
                a(f"    v_fmac_f32 v{R+2*d}, v{TMP+2*w}, v{OB+4*w+d}")
            a(f"    v_fmac_f32 v{R+10}, v{TMP+2*w}, v{TMP+2*w+1}")
        for d in range(4):
            a(f"    v_mov_b32 v{R+2*d+1}, s{TAG}")
        a(f"""
    v_mov_b32 v{R+8}, v12
    v_mov_b32 v{R+9}, s{TAG}
    v_mov_b32 v{R+11}, s{TAG}
    s_mul_i32 s64, s2, {APS}
    s_add_u32 s64, s64, {AP}
    v_lshlrev_b32 v13, 5, v0
    buffer_store_dwordx4 v[{R}:{R+3}], v13, {srd(SWS)}, s64 offen sc1
    buffer_store_dwordx4 v[{R+4}:{R+7}], v13, {srd(SWS)}, s64 offen offset:16 sc1
    v_lshrrev_b32 v13, 5, v0
    v_lshlrev_b32 v13, 4, v13
    v_and_b32 v12, 31, v0
    v_cmp_eq_u32 vcc, 0, v12
    s_mov_b64 exec, vcc
    buffer_store_dwordx4 v[{R+8}:{R+11}], v13, {srd(SWS)}, s64 offen offset:2048 sc1
    s_mov_b64 exec, -1
    v_mov_b32 v12, {L_CT + 24}
    v_mov_b32 v13, 1
    s_mov_b64 exec, 1
    ds_write_b32 v12, v13
    s_mov_b64 exec, -1
L_ap_done:
""")
        self.stamp()
        a(f"""
    s_cmp_eq_u32 s40, 2
    s_cbranch_scc1 L_L_skip
    v_mov_b32 v12, {L_CT + (20 if self.Lgate == 'V' else 24)}
    s_mov_b32 s96, 0
L_vwait:
    ds_read_b32 v13, v12
    s_waitcnt lgkmcnt(0)
    v_readfirstlane_b32 s62, v13
    s_cmp_ge_u32 s62, {8 if self.Lgate == 'V' else 1}
    s_cbranch_scc1 L_vready
    s_add_u32 s96, s96, 1
    s_cmp_gt_u32 s96, {self.spin * 20}
    s_cbranch_scc1 L_vready
    s_sleep 1
    s_branch L_vwait
L_vready:
""")
        lloads()
        a(f"""
    s_cmp_eq_u32 s40, 1
    s_cbranch_scc1 L_L_down
""")
        G = VK
        a(f"""
    v_and_b32 v12, 1, v0
    v_lshlrev_b32 v12, 7, v12           ; b*128 slots
    v_bfe_u32 v13, v0, 2, 2             ; s2
    v_add_u32 v12, v12, v13
    s_lshl_b32 s62, s42, 3              ; kvh*8
    v_add_u32 v12, s62, v12
    v_mul_u32_u24 v12, {APS}, v12
    s_lshr_b32 s62, s3, 2               ; h
    s_lshl_b32 s64, s62, 4              ; h*16
    s_add_u32 s58, s64, {AP + 2048}
    s_add_u32 s59, s58, {4*APS}
    s_lshl_b32 s62, s3, 8               ; (h*128 + 32(w&3))*8 = w*256
    s_add_u32 s56, s62, {AP}
    s_add_u32 s57, s56, {4*APS}
    v_bfe_u32 v13, v0, 1, 1
    v_lshl_add_u32 v13, v2, 1, v13      ; 2g+u
    v_lshl_add_u32 v13, v13, 5, v12     ; + 4(2g+u)*8
""")
        def gather():
            a(f"    buffer_load_dwordx4 v[{G}:{G+3}], v13, {srd(SWS)}, s56 offen sc1")
            a(f"    buffer_load_dwordx4 v[{G+4}:{G+7}], v13, {srd(SWS)}, s56 offen offset:16 sc1")
            a(f"    buffer_load_dwordx4 v[{G+8}:{G+11}], v13, {srd(SWS)}, s57 offen sc1")
            a(f"    buffer_load_dwordx4 v[{G+12}:{G+15}], v13, {srd(SWS)}, s57 offen offset:16 sc1")
            a(f"    buffer_load_dwordx4 v[{G+16}:{G+19}], v12, {srd(SWS)}, s58 offen sc1")
            a(f"    buffer_load_dwordx4 v[{G+20}:{G+23}], v12, {srd(SWS)}, s59 offen sc1")
        BW = VV + 32
        a(f"""
    v_mov_b32 v{TMP}, {L_CT + 24}
    s_mov_b32 s96, 0
L_apwait:
    ds_read_b32 v{TMP+1}, v{TMP}
    s_waitcnt lgkmcnt(0)
    v_readfirstlane_b32 s62, v{TMP+1}
    s_cmp_lg_u32 s62, 0
    s_cbranch_scc1 L_apready
    s_add_u32 s96, s96, 1
    s_cmp_gt_u32 s96, {self.spin * 20}
    s_cbranch_scc1 L_apready
    s_sleep 1
    s_branch L_apwait
L_apready:
""")
        gather()
        a("    s_waitcnt vmcnt(6)")
        for j in range(8):
            jj, half = j >> 1, j & 1
            sel = S_SELHI if half else S_SELLO
            for p in range(2):
                a(f"    v_perm_b32 v{BW+2*j+p}, v{VL+4*(2*p+1)+jj}, v{VL+4*(2*p)+jj}, s{sel}")
        a("    s_waitcnt vmcnt(0)")
        self.poll_masked([G+1, G+3, G+5, G+7, G+9, G+11, G+13, G+15, G+17, G+19, G+21, G+23], gather, "ap", sleep=self.psleep)
        self.stamp()
        mA, lA, mB, lB = G+16, G+18, G+20, G+22
        a(f"""
    v_max_f32 v{TMP}, v{mA}, v{mB}
""")
        self.rowsum16(TMP, op="v_max_f32", rs=(4, 8))
        a(f"""
    v_sub_f32 v{mA}, v{mA}, v{TMP}
    v_sub_f32 v{mB}, v{mB}, v{TMP}
    v_mul_f32 v{mA}, 0x3fb8aa3b, v{mA}
    v_mul_f32 v{mB}, 0x3fb8aa3b, v{mB}
    v_exp_f32 v{mA}, v{mA}
    v_exp_f32 v{mB}, v{mB}
    v_mul_f32 v{TMP}, v{mA}, v{lA}
    v_fmac_f32 v{TMP}, v{mB}, v{lB}
""")
        for d in range(4):
            a(f"    v_mul_f32 v{TMP+1+d}, v{mA}, v{G+2*d}")
        for d in range(4):
            a(f"    v_fmac_f32 v{TMP+1+d}, v{mB}, v{G+8+2*d}")
        for r in (4, 8):
            for d in range(5):
                a(f"    v_add_f32_dpp v{TMP+d}, v{TMP+d}, v{TMP+d} row_ror:{r} row_mask:0xf bank_mask:0xf")
        a(f"    v_rcp_f32 v{TMP}, v{TMP}")
        for d in range(4):
            a(f"    v_mul_f32 v{TMP+1+d}, v{TMP+1+d}, v{TMP}")
        a(f"    v_cvt_pk_bf16_f32 v6, v{TMP+1}, v{TMP+2}")
        a(f"    v_cvt_pk_bf16_f32 v7, v{TMP+3}, v{TMP+4}")
        for j in range(8):
            a(f"    v_mfma_f32_16x16x16_bf16 v[{ACC+4*j}:{ACC+4*j+3}], v[6:7], v[{BW+2*j}:{BW+2*j+1}], 0")
        a("    s_branch L_L_red")
        a("L_L_down:")
        A2 = 6
        a("    s_waitcnt vmcnt(6)")
        self.poll_check([HG+1, HG+3, HG+5, HG+7, HG+9, HG+11], hload, "h")
        for p in range(3):
            gq, uq = HG + 2 * p, HG + 6 + 2 * p
            a(f"""
    v_lshlrev_b32 v{TMP}, 16, v{gq}
    v_and_b32 v{TMP+1}, 0xffff0000, v{gq}
    v_mul_f32 v{TMP+2}, 0xbfb8aa3b, v{TMP}
    v_mul_f32 v{TMP+3}, 0xbfb8aa3b, v{TMP+1}
    v_exp_f32 v{TMP+2}, v{TMP+2}
    v_exp_f32 v{TMP+3}, v{TMP+3}
    v_add_f32 v{TMP+2}, 1.0, v{TMP+2}
    v_add_f32 v{TMP+3}, 1.0, v{TMP+3}
    v_rcp_f32 v{TMP+4}, v{TMP+2}
    v_rcp_f32 v{TMP+5}, v{TMP+3}
    v_mul_f32 v{TMP+6}, v{TMP}, v{TMP+4}
    v_mul_f32 v{TMP+7}, v{TMP+1}, v{TMP+5}
    v_fma_f32 v{TMP+8}, -v{TMP+6}, v{TMP+2}, v{TMP}
    v_fma_f32 v{TMP+9}, -v{TMP+7}, v{TMP+3}, v{TMP+1}
    v_fma_f32 v{TMP+6}, v{TMP+8}, v{TMP+4}, v{TMP+6}
    v_fma_f32 v{TMP+7}, v{TMP+9}, v{TMP+5}, v{TMP+7}
    v_cvt_pk_bf16_f32 v{TMP+6}, v{TMP+6}, v{TMP+7}
    v_lshlrev_b32 v{TMP}, 16, v{TMP+6}
    v_and_b32 v{TMP+1}, 0xffff0000, v{TMP+6}
    v_lshlrev_b32 v{TMP+2}, 16, v{uq}
    v_and_b32 v{TMP+3}, 0xffff0000, v{uq}
    v_mul_f32 v{TMP}, v{TMP}, v{TMP+2}
    v_mul_f32 v{TMP+1}, v{TMP+1}, v{TMP+3}
    v_cvt_pk_bf16_f32 v{A2+p}, v{TMP}, v{TMP+1}
""")
        a(f"    v_mov_b32 v{A2+3}, 0")
        a("    s_waitcnt vmcnt(0)")
        k = 0
        for jj in range(4):
            for half in range(2):
                j = 2 * jj + half
                T = TMP + 4 * (k % 4); k += 1
                sel = S_SELHI if half else S_SELLO
                for p in range(3):
                    a(f"    v_perm_b32 v{T+p}, v{VL+4*(2*p+1)+jj}, v{VL+4*(2*p)+jj}, s{sel}")
                a(f"    v_mov_b32 v{T+3}, 0")
                a(f"    v_mfma_f32_16x16x32_bf16 v[{ACC+4*j}:{ACC+4*j+3}], v[6:9], v[{T}:{T+3}], 0")
        a(f"""
L_L_red:
    s_lshl_b32 s62, s3, 9
    v_lshlrev_b32 v12, 5, v5
    v_add_u32 v12, s62, v12
""")
        self.usum_write(12)
        self.arrive(16, "L_L_skip")
        a("    v_lshlrev_b32 v12, 3, v0")
        for w in range(8):
            a(f"    ds_read_b64 v[{VV+2*w}:{VV+2*w+1}], v12 offset:{L_R + w*512}")
        a("    s_waitcnt lgkmcnt(0)")
        for w in range(1, 8):
            a(f"    v_add_f32 v{VV}, v{VV}, v{VV+2*w}")
            a(f"    v_add_f32 v{VV+1}, v{VV+1}, v{VV+2*w+1}")
        a(f"""
    v_mov_b32 v{TMP}, v{VV}
    v_mov_b32 v{TMP+1}, s{TAG}
    v_mov_b32 v{TMP+2}, v{VV+1}
    v_mov_b32 v{TMP+3}, s{TAG}
    s_mul_i32 s62, s41, 28
    s_add_u32 s62, s62, s42
    s_lshl_b32 s62, s62, 10
    s_add_u32 s62, s62, {FP}
    v_lshlrev_b32 v12, 4, v0
    buffer_store_dwordx4 v[{TMP}:{TMP+3}], v12, {srd(SWS)}, s62 offen sc1
L_L_skip:
""")
        self.stamp()
        a(f"""
    s_cmp_lt_u32 s2, 184
    s_cbranch_scc1 L_fin
    s_cmp_lg_u32 s3, 0
    s_cbranch_scc1 L_fin
    s_and_b32 s62, s2, 7
    s_mul_i32 s62, s62, 9
    s_lshr_b32 s64, s2, 3
    s_add_u32 s62, s62, s64
    s_sub_u32 s62, s62, 23              ; r = 9x + j - 23
    s_lshr_b32 s64, s62, 3              ; cg
    s_and_b32 s65, s62, 7               ; sub
    s_mul_i32 s66, s64, {28*1024}
    s_lshl_b32 s67, s65, 7
    s_add_u32 s66, s66, s67
    s_add_u32 s66, s66, {FP}
    v_lshlrev_b32 v12, 10, v4
    v_lshl_add_u32 v12, v5, 4, v12
    v_cmp_gt_u32 vcc, 32, v0
    v_mov_b32 v13, 0x7fff0000
    v_add_u32 v6, {3*8192}, v12
    v_cndmask_b32 v13, v13, v6, vcc
    s_lshr_b32 s67, s65, 2
    s_mul_i32 s67, s67, 576
    s_lshl_b32 s68, s64, 6
    s_add_u32 s67, s67, s68
    s_and_b32 s68, s65, 3
    s_lshl_b32 s68, s68, 4
    s_add_u32 s67, s67, s68
    s_lshl_b32 s67, s67, 1
    v_lshlrev_b32 v7, 2, v5             ; c*4 bytes
    buffer_load_dword v8, v7, {srd(SX)}, s67 offen
    s_add_u32 s68, s66, 8192
    s_add_u32 s69, s66, 16384
""")
        F = VK
        def fl():
            a(f"    buffer_load_dwordx4 v[{F}:{F+3}], v12, {srd(SWS)}, s66 offen sc1")
            a(f"    buffer_load_dwordx4 v[{F+4}:{F+7}], v12, {srd(SWS)}, s68 offen sc1")
            a(f"    buffer_load_dwordx4 v[{F+8}:{F+11}], v12, {srd(SWS)}, s69 offen sc1")
            a(f"    s_and_b64 exec, exec, s[54:55]")
            a(f"    s_cbranch_execz {lb}")
            a(f"    buffer_load_dwordx4 v[{F+12}:{F+15}], v13, {srd(SWS)}, s66 offen sc1")
            a(f"{lb}:")
        a("    v_cmp_gt_u32 s[54:55], 32, v0")
        a(f"    v_mov_b32 v{F+12}, 0")
        a(f"    v_mov_b32 v{F+13}, s{TAG}")
        a(f"    v_mov_b32 v{F+14}, 0")
        a(f"    v_mov_b32 v{F+15}, s{TAG}")
        lb = self.lab("f4a")
        fl()
        a("    s_mov_b64 exec, -1")
        a("    s_waitcnt vmcnt(0)")
        lb = self.lab("f4b")
        self.poll_masked([F+1, F+3, F+5, F+7, F+9, F+11, F+13, F+15], fl, "fp", sleep=self.psleep)
        a(f"""
    v_add_f32 v{F}, v{F}, v{F+4}
    v_add_f32 v{F+2}, v{F+2}, v{F+6}
    v_add_f32 v{F+8}, v{F+8}, v{F+12}
    v_add_f32 v{F+10}, v{F+10}, v{F+14}
""")
        for r in (F, F+2, F+8, F+10):
            a(f"    v_add_f32_dpp v{r}, v{r}, v{r} row_ror:8 row_mask:0xf bank_mask:0xf")
        for r in (F, F+2, F+8, F+10):
            self.x16(r, TMP, "v_add_f32")
            self.x32(r, TMP, "v_add_f32")
        a(f"""
    v_cvt_pk_bf16_f32 v{TMP}, v{F}, v{F+2}
    v_cvt_pk_bf16_f32 v{TMP+1}, v{F+8}, v{F+10}
    v_lshlrev_b32 v{TMP+2}, 16, v{TMP}
    v_and_b32 v{TMP+3}, 0xffff0000, v{TMP}
    v_lshlrev_b32 v{TMP+4}, 16, v8
    v_and_b32 v{TMP+5}, 0xffff0000, v8
    v_add_f32 v{TMP+2}, v{TMP+2}, v{TMP+4}
    v_add_f32 v{TMP+3}, v{TMP+3}, v{TMP+5}
    v_cvt_pk_bf16_f32 v{TMP}, v{TMP+2}, v{TMP+3}
    v_lshlrev_b32 v{TMP+2}, 16, v{TMP}
    v_and_b32 v{TMP+3}, 0xffff0000, v{TMP}
    v_lshlrev_b32 v{TMP+4}, 16, v{TMP+1}
    v_and_b32 v{TMP+5}, 0xffff0000, v{TMP+1}
    v_add_f32 v{TMP+2}, v{TMP+2}, v{TMP+4}
    v_add_f32 v{TMP+3}, v{TMP+3}, v{TMP+5}
    v_cvt_pk_bf16_f32 v{TMP}, v{TMP+2}, v{TMP+3}
    s_mov_b64 exec, 0xff
    buffer_store_dword v{TMP}, v7, {srd(SOUT)}, s67 offen
    s_mov_b64 exec, -1
    s_cmp_lg_u32 s2, 184
    s_cbranch_scc1 L_fin
    v_mov_b32 v{TMP+1}, s{TAG}
    v_mov_b32 v{TMP+2}, {EPOCH}
    s_mov_b64 exec, 1
    buffer_store_dword v{TMP+1}, v{TMP+2}, {srd(SWS)}, 0 offen
    s_mov_b64 exec, -1
L_fin:
""")
        if self.pad:
            a(f"""
    s_cmp_lg_u32 s2, 0
    s_cbranch_scc1 L_nopad
L_padloop:
    s_memrealtime s[62:63]
    s_waitcnt lgkmcnt(0)
    s_sub_u32 s62, s62, s100
    s_cmp_lt_u32 s62, {self.pad}
    s_cbranch_scc1 L_padloop
L_nopad:
""")
        if self.probe is not None:
            self.stamp()
            k = self.probe
            a(f"""
    s_waitcnt lgkmcnt(0)
    s_load_dwordx2 s[60:61], s[0:1], 80
    s_waitcnt lgkmcnt(0)
    s_mov_b32 s56, s60
    s_mov_b32 s57, s61
    s_mov_b32 s58, 256
    s_mov_b32 s59, 0x20000
    s_sub_u32 s62, s{70+2*k}, s70
    s_cmp_lt_u32 s62, 10000
    s_cbranch_scc0 L_pr_noval
    v_mov_b32 v12, {L_CT + 32}
    v_mov_b32 v13, s{70+2*k}
    {"v_not_b32 v13, v13" if self.probe_min else ""}
    s_mov_b64 exec, 1
    ds_max_u32 v12, v13
    s_mov_b64 exec, -1
L_pr_noval:
    v_mov_b32 v12, {L_CT + 36}
    v_mov_b32 v13, s70
    v_not_b32 v13, v13
    s_mov_b64 exec, 1
    ds_max_u32 v12, v13
    s_mov_b64 exec, -1
""")
            self.arrive(28, "L_end")
            a(f"""
L_pr_w0:
    s_sleep 8
    s_memrealtime s[62:63]
    s_waitcnt lgkmcnt(0)
    s_sub_u32 s62, s62, s70
    s_cmp_lt_u32 s62, 3000
    s_cbranch_scc1 L_pr_w0
    v_mov_b32 v12, {L_CT + 32}
    ds_read_b64 v[14:15], v12
    s_waitcnt lgkmcnt(0)
    v_mov_b32 v12, 0
    v_mov_b32 v13, 4
    s_mov_b64 exec, 1
    buffer_atomic_umax v14, v12, s[56:59], 0 offen
    buffer_atomic_umax v15, v13, s[56:59], 0 offen
    s_mov_b64 exec, -1
    s_waitcnt vmcnt(0)
    s_cmp_lg_u32 s2, 0
    s_cbranch_scc1 L_end
L_pr_w1:
    s_memrealtime s[62:63]
    s_waitcnt lgkmcnt(0)
    s_sub_u32 s62, s62, s70
    s_cmp_lt_u32 s62, 5000
    s_cbranch_scc1 L_pr_w1
    v_mov_b32 v12, 0
    buffer_load_dwordx2 v[14:15], v12, s[56:59], 0 offen sc0 sc1
    s_waitcnt vmcnt(0)
    {"v_not_b32 v14, v14" if self.probe_min else ""}
    v_not_b32 v15, v15
    v_sub_u32 v14, v14, v15
    s_nop 1
    v_readfirstlane_b32 s64, v14
    s_min_u32 s64, s64, 3000
    s_mul_i32 s64, s64, 10
    s_add_u32 s64, s64, 5000
L_pr_w2:
    s_memrealtime s[62:63]
    s_waitcnt lgkmcnt(0)
    s_sub_u32 s62, s62, s70
    s_cmp_lt_u32 s62, s64
    s_cbranch_scc1 L_pr_w2
""")
        elif self.stamps:
            self.stamp()
            ns = self.nst
            a("    s_waitcnt lgkmcnt(0)")
            a(f"""
    s_lshl_b32 s62, s2, 3
    s_add_u32 s62, s62, s3
    s_lshl_b32 s62, s62, 7
    s_add_u32 s62, s62, {STAMP}
""")
            for k in range(ns):
                a(f"    v_writelane_b32 v{TMP}, s{70+2*k}, {2*k}")
                a(f"    v_writelane_b32 v{TMP}, s{71+2*k}, {2*k+1}")
            a("    s_getreg_b32 s64, hwreg(HW_REG_XCC_ID)")
            a("    s_getreg_b32 s65, hwreg(HW_REG_HW_ID)")
            a(f"    v_writelane_b32 v{TMP}, s64, 30")
            a(f"    v_writelane_b32 v{TMP}, s65, 31")
            a(f"""
    v_lshlrev_b32 v12, 2, v0
    v_cmp_gt_u32 vcc, 32, v0
    s_and_saveexec_b64 s[66:67], vcc
    buffer_store_dword v{TMP}, v12, {srd(SWS)}, s62 offen
""")
        a("""
L_end:
    s_endpgm
""")
        lines, n = hz.fix(a.lines)
        return "\n".join(lines)

def make(fn, **kw):
    g = Gen(**kw)
    body = g.build()
    lds = (L_KS + 8 * 4352) if g.klin else LDS_SZ
    txt = file_text([f"; @launch grid=(256,1,1) block=(512,1,1) lds={lds}"], [(NAME + "_kernel", body, 256, 102, 256)])
    open(fn, "w").write(txt)
    return g

if __name__ == "__main__":
    base = dict(klin=True, xbar=True, split=True, W=3, WV=4, NV0=4, K0=2, NE0=5)
    cfgs = {
      "k9a": dict(psleep=2),
      "k9b": dict(psleep=2, WL=1),
      "k9c": dict(psleep=2, WL=2),
      "k9d": dict(psleep=2, Lgate='A'),
      "k9e": dict(psleep=0),
      "k9f": dict(psleep=1, Lgate='A', WL=2),
    }
    for k, v in cfgs.items():
        make(k + "_st.s", stamps=True, **base, **v)
    make("k9a.s", **base, psleep=2)
    print(" ".join(k + "_st.s" for k in cfgs))
```
